```python
import torch

def _softmax(x, axis=-1):
    return torch.softmax(x, dim=axis)
def _gelu(x):
    return torch.nn.functional.gelu(x, approximate="tanh")
def _silu(x):
    return torch.nn.functional.silu(x)
def _sigmoid(x):
    return torch.sigmoid(x)
def _layernorm(x, axis=-1, eps=1e-5):
    m = x.mean(dim=axis, keepdim=True)
    v = x.var(dim=axis, keepdim=True, unbiased=False)
    return (x - m) / torch.sqrt(v + eps)
def _scatter_add(tgt, idx, src, axis=0):
    return tgt.clone().index_add_(axis, idx, src)
def _segment_sum(src, seg, n):
    out = torch.zeros((n,) + src.shape[1:], dtype=src.dtype)
    return out.index_add_(0, seg, src)
def _pad(x, pw):
    flat = tuple(v for pair in reversed(pw) for v in pair)
    return torch.nn.functional.pad(x, flat)

kernel_name = 'recurrent_scan__ssm_conv_s4d__dense_activation_mish__prompt'

def setup_inputs():

    _w = (lambda a: (lambda t: t.to(torch.bfloat16) if t.is_floating_point() else t)(torch.as_tensor(a)))
    def _A_setup():
        Bsz, L, D, N = 1, 2048, 512, 128
        return {
            "u": _w((lambda *s: torch.randn(*s, dtype=torch.bfloat16) * 0.05)(Bsz, L, D)),
            "log_A_real": _w((lambda *s: torch.randn(*s, dtype=torch.bfloat16) * 3.2)(D, N) * 0.5),
            "A_imag": _w((lambda *s: torch.randn(*s, dtype=torch.bfloat16) * 0.2)(D, N) * 3.14),
            "C_real": _w((lambda *s: torch.randn(*s, dtype=torch.bfloat16) * 0.8)(D, N) / N ** 0.5),
            "C_imag": _w((lambda *s: torch.randn(*s, dtype=torch.bfloat16) * 0.8)(D, N) / N ** 0.5),
            "log_dt": _w((lambda *s: torch.randn(*s, dtype=torch.bfloat16) * 0.2)(D) * 0.5 - 4.0),
            "D_skip": _w((lambda *s: torch.randn(*s, dtype=torch.bfloat16) * 0.2)(D)),
        }
    _A_in = _A_setup()

    def _B_setup():
        B, S, D, F = 1, 2048, 512, 1376
        return {
            "x": _w((lambda *s: torch.randn(*s, dtype=torch.bfloat16) * 0.05)(B, S, D)),
            "w1": _w((lambda *s: torch.randn(*s, dtype=torch.bfloat16) * 0.8)(D, F) * (D ** -0.5)),
            "b1": _w((lambda *s: torch.randn(*s, dtype=torch.bfloat16) * 0.4)(F)),
            "w2": _w((lambda *s: torch.randn(*s, dtype=torch.bfloat16) * 0.1)(F, D) * (F ** -0.5)),
        }
    _B_in = _B_setup()

    return {
        "A_u": _A_in["u"],
        "A_log_A_real": _A_in["log_A_real"],
        "A_A_imag": _A_in["A_imag"],
        "A_C_real": _A_in["C_real"],
        "A_C_imag": _A_in["C_imag"],
        "A_log_dt": _A_in["log_dt"],
        "A_D_skip": _A_in["D_skip"],
        "B_x": _B_in["x"],
        "B_w1": _B_in["w1"],
        "B_b1": _B_in["b1"],
        "B_w2": _B_in["w2"],
    }

def reference(A_u, A_log_A_real, A_A_imag, A_C_real, A_C_imag, A_log_dt, A_D_skip, B_x, B_w1, B_b1, B_w2):
    def _A_ref(u, log_A_real, A_imag, C_real, C_imag, log_dt, D_skip):
        L = u.shape[1]
        dt = torch.exp(log_dt)
        A = -torch.exp(log_A_real) + 1j * A_imag
        C = (C_real + 1j * C_imag) * dt[:, None]
        pos = (lambda x, dt: x.to(dt))(torch.arange(L), log_dt.dtype)
        P = torch.exp((A * dt[:, None])[:, :, None] * pos[None, None, :])
        K = 2.0 * torch.einsum("dn,dnl->dl", C, P).real
        L2 = 2 * L
        u_t = (lambda x, *d: x.permute(*d))(u, 0, 2, 1)
        Kf = (lambda x, *a, **k: torch.fft.rfft(x.float(), *a, **k))(K, L2)
        Uf = (lambda x, *a, **k: torch.fft.rfft(x.float(), *a, **k))(u_t, L2)
        y = (lambda x, *a, **k: torch.fft.irfft(x, *a, **k).to(torch.bfloat16))(Uf * Kf[None, :, :], L2)[:, :, :L]
        y = (lambda x, *d: x.permute(*d))(y, 0, 2, 1)
        return y + u * D_skip[None, None, :]

    def _B_ref(x, w1, b1, w2):
        h = torch.einsum("bsd,df->bsf", x, w1) + b1
        sp = torch.log1p(torch.exp(-torch.abs(h))) + torch.where(h > 0, h, torch.zeros_like(h))
        act = h * torch.tanh(sp)
        return torch.einsum("bsf,fd->bsd", act, w2)

    x = A_u
    xn = _layernorm(x, axis=-1)
    s = _A_ref(xn, A_log_A_real, A_A_imag, A_C_real, A_C_imag, A_log_dt, A_D_skip)
    g = _silu(_B_ref(xn, B_w1, B_b1, B_w2))
    return x + s * g
```

```python
import re
KNAME = "recurrent_scan__ssm_conv_s4d__dense_activation_mish__prompt_kernel"

class Asm:
    def __init__(self):
        self.lines = []
        self.uid = 0
    def __call__(self, s=""):
        for l in s.split("\n"):
            m = re.search(r"offset:(\d+)", l)
            if m:
                o = int(m.group(1)); t = l.strip()
                if t.startswith("buffer_"): assert o < 4096, l
                if t.startswith("ds_"): assert o < 65536, l
                if t.startswith("global_"): assert o < 4096, l
            self.lines.append("  " + l if l and not l.endswith(":") and not l.startswith(".") and not l.startswith(";") else l)
    def lab(self, base="L"):
        self.uid += 1
        return f"{base}_{self.uid}"
    def text(self):
        return "\n".join(self.lines) + "\n"

class Regs:
    def __init__(self, prefix, start, limit):
        self.p = prefix; self.n = start; self.limit = limit; self.hi = start
    def alloc(self, n=1, align=1):
        self.n = (self.n + align - 1) // align * align
        r = self.n; self.n += n
        assert self.n <= self.limit, f"out of {self.p} regs"
        self.hi = max(self.hi, self.n)
        return r
    def mark(self): return self.n
    def release(self, m): self.n = m

def v(r, n=1): return f"v{r}" if n == 1 else f"v[{r}:{r+n-1}]"
def s(r, n=1): return f"s{r}" if n == 1 else f"s[{r}:{r+n-1}]"
def acc(r, n=1): return f"a{r}" if n == 1 else f"a[{r}:{r+n-1}]"

def kernel_begin(a, name):
    a(f".globl {name}")
    a(".p2align 8")
    a(f".type {name},@function")
    a(f"{name}:")

def kernel_desc(a, name, vgpr, sgpr=102, accum=None):
    if accum is None:
        accum = (vgpr + 3) // 4 * 4
    a(f".amdhsa_kernel {name}")
    a(f"  .amdhsa_next_free_vgpr {vgpr}")
    a(f"  .amdhsa_next_free_sgpr {sgpr}")
    a(f"  .amdhsa_accum_offset {accum}")
    a("  .amdhsa_group_segment_fixed_size 0")
    a("  .amdhsa_kernarg_size 112")
    a("  .amdhsa_user_sgpr_count 2")
    a("  .amdhsa_user_sgpr_kernarg_segment_ptr 1")
    a("  .amdhsa_system_sgpr_workgroup_id_x 1")
    a("  .amdhsa_float_denorm_mode_32 3")
    a("  .amdhsa_float_denorm_mode_16_64 3")
    a(".end_amdhsa_kernel")

def srd(a, d, base, nbytes, off=None):
    if off is None:
        a(f"s_mov_b32 s{d}, s{base}")
        a(f"s_and_b32 s{d+1}, s{base+1}, 0xffff")
    else:
        a(f"s_add_u32 s{d}, s{base}, {off}")
        a(f"s_addc_u32 s{d+1}, s{base+1}, 0")
        a(f"s_and_b32 s{d+1}, s{d+1}, 0xffff")
    a(f"s_mov_b32 s{d+2}, {nbytes}")
    a(f"s_mov_b32 s{d+3}, 0x00020000")

KA = dict(u=0, logA=8, Aim=16, Cre=24, Cim=32, logdt=40, Dskip=48, Bx=56, w1=64, b1=72, w2=80, out=88, dbg=96, ws=104)
WS_XNT = 0
WS_ACT = 2 << 20
ACT_G = 344 * 512
WS_ST = 8 << 20

WS_STAMP = 16 << 20
class Stamps:
    def __init__(self, a, S, on, n=10):
        self.a = a; self.on = on; self.k = 0; self.n = n
        if on:
            self.base = S.alloc(2 * n + 4, 2)
            self.rt0 = self.base + 2 * n; self.rt1 = self.rt0 + 2
    def start(self):
        if self.on:
            self.a(f"s_memrealtime {s(self.rt0,2)}")
            self.stamp()
    def stamp(self):
        if self.on:
            assert self.k < self.n
            self.a(f"s_memtime {s(self.base + 2*self.k, 2)}")
            self.k += 1
    def flush(self, pWS, vT, vT2, sT, srd_regs, off=0):
        if not self.on: return
        a = self.a
        a(f"s_memrealtime {s(self.rt1,2)}")
        a("s_waitcnt lgkmcnt(0)")
        srd(a, srd_regs, pWS, 1 << 16, off=WS_STAMP + off)
        a(f"s_lshl_b32 {s(sT)}, s2, 6")
        a(f"v_mov_b32 {v(vT)}, {s(sT)}")
        a(f"v_mov_b32 {v(vT2)}, {s(self.rt0)}")
        a(f"buffer_store_dword {v(vT2)}, {v(vT)}, {s(srd_regs,4)}, 0 offen offset:0")
        a(f"v_mov_b32 {v(vT2)}, {s(self.rt1)}")
        a(f"buffer_store_dword {v(vT2)}, {v(vT)}, {s(srd_regs,4)}, 0 offen offset:4")
        for i in range(1, self.k):
            a(f"s_sub_u32 {s(sT)}, {s(self.base+2*i)}, {s(self.base)}")
            a(f"v_mov_b32 {v(vT2)}, {s(sT)}")
            a(f"buffer_store_dword {v(vT2)}, {v(vT)}, {s(srd_regs,4)}, 0 offen offset:{4+4*i}")
```

```python
from common import *

LOG2E = 0x3fb8aa3b
ONES = 0x3f803f80

def gen_kA(a, name, dbg_stamp=False):
    NST = 8
    SLOT = 32768
    XOFF = 24576
    SLICE = 4 * SLOT
    EXCH = SLICE + 8192
    STATP = EXCH
    CSX = EXCH + 2048
    RS = EXCH + 3584
    MR = RS + 256
    LDS = MR + 256
    V = Regs('v', 1, 256); S = Regs('s', 4, 100)
    end = a.lab("A_end")
    kernel_begin(a, name)
    a("s_cmp_ge_u32 s2, 256")
    a(f"s_cbranch_scc1 {end}")
    ST = Stamps(a, S, dbg_stamp); ST.start()
    pU = S.alloc(2, 2); pW1 = S.alloc(2, 2); pB1 = S.alloc(2, 2); pWS = S.alloc(2, 2)
    a(f"s_load_dwordx2 {s(pU,2)}, s[0:1], {KA['u']}")
    a(f"s_load_dwordx2 {s(pW1,2)}, s[0:1], {KA['w1']}")
    a(f"s_load_dwordx2 {s(pB1,2)}, s[0:1], {KA['b1']}")
    a(f"s_load_dwordx2 {s(pWS,2)}, s[0:1], {KA['ws']}")
    rX = S.alloc(4, 4); rW = S.alloc(4, 4); rB = S.alloc(4, 4); rACT = S.alloc(4, 4); rXT = S.alloc(4, 4)
    sW = S.alloc(); sG = S.alloc(); sJ = S.alloc(); sT0 = S.alloc(); sNT = S.alloc(); sFQ = S.alloc(); sLH = S.alloc()
    sT = S.alloc(); sT2 = S.alloc()
    vLane = V.alloc(); vT = V.alloc(); vT2 = V.alloc(); vT3 = V.alloc(); vT4 = V.alloc()
    a(f"v_lshrrev_b32 {v(vT)}, 6, v0")
    a(f"v_and_b32 {v(vLane)}, 63, v0")
    a(f"v_readfirstlane_b32 {s(sW)}, {v(vT)}")
    a(f"s_and_b32 {s(sG)}, s2, 7")
    a(f"s_lshr_b32 {s(sT)}, s2, 6")
    a(f"s_lshl_b32 {s(sT)}, {s(sT)}, 3")
    a(f"s_add_u32 {s(sG)}, {s(sG)}, {s(sT)}")
    a(f"s_lshr_b32 {s(sJ)}, s2, 3")
    a(f"s_and_b32 {s(sJ)}, {s(sJ)}, 7")
    a(f"s_mul_i32 {s(sT0)}, {s(sJ)}, 11")
    a(f"s_cmp_eq_u32 {s(sJ)}, 7")
    a(f"s_cselect_b32 {s(sT0)}, 76, {s(sT0)}")
    a(f"s_cmp_lt_u32 {s(sJ)}, 6")
    a(f"s_cselect_b32 {s(sNT)}, 11, 10")
    a(f"s_and_b32 {s(sFQ)}, {s(sW)}, 3")
    a(f"s_lshr_b32 {s(sLH)}, {s(sW)}, 2")
    vW1o = V.alloc(3); vXo = V.alloc(); vSo = V.alloc()
    a(f"s_lshl_b32 {s(sT2)}, {s(sNT)}, 1")
    for q in range(3):
        a(f"s_mul_i32 {s(sT)}, {s(sW)}, 192")
        a(f"s_add_u32 {s(sT)}, {s(sT)}, {64*q}")
        a(f"v_add_u32 {v(vT)}, {s(sT)}, {v(vLane)}")
        a(f"v_mul_u32_u24 {v(vT2)}, 2731, {v(vT)}")
        a(f"v_lshrrev_b32 {v(vT2)}, 16, {v(vT2)}")
        a(f"v_mul_u32_u24 {v(vT3)}, 24, {v(vT2)}")
        a(f"v_sub_u32 {v(vT)}, {v(vT)}, {v(vT3)}")
        a(f"v_and_b32 {v(vT3)}, 2, {v(vT2)}")
        a(f"v_lshrrev_b32 {v(vT4)}, 1, {v(vT2)}")
        a(f"v_and_b32 {v(vT4)}, 4, {v(vT4)}")
        a(f"v_or_b32 {v(vT3)}, {v(vT3)}, {v(vT4)}")
        a(f"v_xor_b32 {v(vT)}, {v(vT)}, {v(vT3)}")
        a(f"v_mul_u32_u24 {v(vT2)}, 2752, {v(vT2)}")
        a(f"v_lshlrev_b32 {v(vT3)}, 4, {v(vT)}")
        a(f"v_add_u32 {v(vW1o+q)}, {v(vT2)}, {v(vT3)}")
        a(f"v_cmp_le_u32 vcc, {s(sT2)}, {v(vT)}")
        a(f"v_mov_b32 {v(vT2)}, 0x40000000")
        a(f"s_nop 0")
        a(f"v_cndmask_b32 {v(vW1o+q)}, {v(vW1o+q)}, {v(vT2)}, vcc")
    a(f"v_lshrrev_b32 {v(vT)}, 3, {v(vLane)}")
    a(f"s_lshl_b32 {s(sT)}, {s(sW)}, 3")
    a(f"v_add_u32 {v(vT)}, {s(sT)}, {v(vT)}")
    a(f"v_and_b32 {v(vT2)}, 7, {v(vLane)}")
    a(f"v_and_b32 {v(vT3)}, 6, {v(vT)}")
    a(f"v_xor_b32 {v(vT3)}, {v(vT3)}, {v(vT2)}")
    a(f"v_lshlrev_b32 {v(vT)}, 10, {v(vT)}")
    a(f"v_lshlrev_b32 {v(vT3)}, 4, {v(vT3)}")
    a(f"v_add_u32 {v(vXo)}, {v(vT)}, {v(vT3)}")
    a(f"v_lshlrev_b32 {v(vT2)}, 4, {v(vT2)}")
    a(f"v_add_u32 {v(vSo)}, {v(vT)}, {v(vT2)}")
    vA = V.alloc(3); vAb = V.alloc(3); vB0 = V.alloc(); vB1 = V.alloc(); vBb = V.alloc(2)
    vI = V.alloc(); vGq = V.alloc()
    a(f"v_and_b32 {v(vI)}, 15, {v(vLane)}")
    a(f"v_lshrrev_b32 {v(vGq)}, 4, {v(vLane)}")
    a(f"v_lshrrev_b32 {v(vT)}, 2, {v(vI)}")
    a(f"v_lshlrev_b32 {v(vT2)}, 3, {v(vGq)}")
    a(f"v_add_u32 {v(vT)}, {v(vT)}, {v(vT2)}")
    a(f"v_mul_u32_u24 {v(vT)}, 384, {v(vT)}")
    a(f"v_and_b32 {v(vT2)}, 1, {v(vI)}")
    a(f"v_lshlrev_b32 {v(vT2)}, 3, {v(vT2)}")
    a(f"v_add_u32 {v(vT)}, {v(vT)}, {v(vT2)}")
    a(f"v_lshrrev_b32 {v(vT2)}, 1, {v(vI)}")
    a(f"v_and_b32 {v(vT2)}, 1, {v(vT2)}")
    a(f"v_lshlrev_b32 {v(vT2)}, 4, {v(vT2)}")
    a(f"v_add_u32 {v(vT)}, {v(vT)}, {v(vT2)}")
    a(f"v_lshrrev_b32 {v(vT2)}, 2, {v(vI)}")
    a(f"v_and_b32 {v(vT2)}, 2, {v(vT2)}")
    a(f"v_and_b32 {v(vT3)}, 1, {v(vGq)}")
    a(f"v_lshlrev_b32 {v(vT3)}, 2, {v(vT3)}")
    a(f"v_or_b32 {v(vT2)}, {v(vT2)}, {v(vT3)}")
    for t in range(3):
        a(f"s_mul_i32 {s(sT)}, {s(sFQ)}, 6")
        a(f"s_add_u32 {s(sT)}, {s(sT)}, {2*t}")
        a(f"v_xor_b32 {v(vT3)}, {s(sT)}, {v(vT2)}")
        a(f"v_lshlrev_b32 {v(vT3)}, 4, {v(vT3)}")
        a(f"v_add_u32 {v(vAb+t)}, {v(vT)}, {v(vT3)}")
    a(f"s_lshl_b32 {s(sT)}, {s(sLH)}, 5")
    a(f"v_add_u32 {v(vT)}, {s(sT)}, {v(vI)}")
    a(f"v_lshlrev_b32 {v(vT)}, 7, {v(vT)}")
    a(f"v_add_u32 {v(vT)}, {XOFF}, {v(vT)}")
    a(f"v_and_b32 {v(vT2)}, 6, {v(vI)}")
    a(f"v_xor_b32 {v(vT2)}, {v(vT2)}, {v(vGq)}")
    a(f"v_lshlrev_b32 {v(vT3)}, 4, {v(vT2)}")
    a(f"v_add_u32 {v(vBb)}, {v(vT)}, {v(vT3)}")
    a(f"v_xor_b32 {v(vT3)}, 64, {v(vT3)}")
    a(f"v_add_u32 {v(vBb+1)}, {v(vT)}, {v(vT3)}")
    a("s_waitcnt lgkmcnt(0)")
    srd(a, rX, pU, 2048 * 1024)
    srd(a, rW, pW1, 512 * 2752)
    srd(a, rB, pB1, 1376 * 2)
    a(f"s_mul_i32 {s(sT)}, {s(sG)}, {ACT_G}")
    a(f"s_add_u32 {s(sT)}, {s(sT)}, {WS_ACT}")
    srd(a, rACT, pWS, ACT_G, off=s(sT))
    srd(a, rXT, pWS, 512 * 4096, off=WS_XNT)
    vBias = V.alloc(6, 2)
    sTb = S.alloc()
    a(f"s_mul_i32 {s(sTb)}, {s(sFQ)}, 3")
    a(f"s_add_u32 {s(sTb)}, {s(sTb)}, {s(sT0)}")
    a(f"s_lshl_b32 {s(sT)}, {s(sTb)}, 5")
    a(f"v_lshlrev_b32 {v(vT)}, 3, {v(vGq)}")
    a(f"v_add_u32 {v(vT)}, {s(sT)}, {v(vT)}")
    for t in range(3):
        a(f"buffer_load_dwordx2 {v(vBias+2*t,2)}, {v(vT)}, {s(rB,4)}, 0 offen offset:{32*t}")
    sXrow = S.alloc(); sSoW = S.alloc(); sSoX = S.alloc(); sSlotW = S.alloc(); sLdsW = S.alloc(); sLdsX = S.alloc()
    a(f"s_lshl_b32 {s(sXrow)}, {s(sG)}, 16")
    a(f"s_lshl_b32 {s(sT)}, {s(sJ)}, 7")
    a(f"s_add_u32 {s(sT)}, {s(sT)}, {s(sXrow)}")
    a(f"s_lshl_b32 {s(sT2)}, {s(sW)}, 10")
    a(f"s_add_u32 {s(sT2)}, {s(sT2)}, {SLICE}")
    a(f"s_mov_b32 m0, {s(sT2)}")
    a(f"s_nop 0")
    a(f"buffer_load_dwordx4 {v(vSo)}, {s(rX,4)}, {s(sT)} offen lds")
    a(f"s_mul_i32 {s(sLdsW)}, {s(sW)}, 3072")
    a(f"s_lshl_b32 {s(sLdsX)}, {s(sW)}, 10")
    a(f"s_add_u32 {s(sLdsX)}, {s(sLdsX)}, {XOFF}")
    a(f"s_lshl_b32 {s(sSoW)}, {s(sT0)}, 5")
    a(f"s_mov_b32 {s(sSoX)}, {s(sXrow)}")
    a(f"s_mov_b32 {s(sSlotW)}, 0")
    def dma_stage():
        for q in range(3):
            a(f"s_add_u32 {s(sT)}, {s(sSlotW)}, {s(sLdsW)}")
            a(f"s_add_u32 m0, {s(sT)}, {1024*q}")
            a(f"s_nop 0")
            a(f"buffer_load_dwordx4 {v(vW1o+q)}, {s(rW,4)}, {s(sSoW)} offen lds")
        a(f"s_add_u32 m0, {s(sSlotW)}, {s(sLdsX)}")
        a(f"s_add_u32 {s(sSoW)}, {s(sSoW)}, {64*2752}")
        a(f"buffer_load_dwordx4 {v(vXo)}, {s(rX,4)}, {s(sSoX)} offen lds")
        a(f"s_add_u32 {s(sSoX)}, {s(sSoX)}, 128")
        a(f"s_add_u32 {s(sSlotW)}, {s(sSlotW)}, {SLOT}")
        a(f"s_and_b32 {s(sSlotW)}, {s(sSlotW)}, {4*SLOT-1}")
    for st in range(3): dma_stage()
    vAcc = V.alloc(24, 4); vCS = V.alloc(12, 4); vOnes = V.alloc(4, 4)
    vS1 = V.alloc(2); vS2 = V.alloc(2)
    fA = [V.alloc(12, 4), V.alloc(12, 4)]; fB = [V.alloc(8, 4), V.alloc(8, 4)]
    for i in range(24): a(f"v_mov_b32 {v(vAcc+i)}, 0")
    for i in range(12): a(f"v_mov_b32 {v(vCS+i)}, 0")
    for i in range(4): a(f"v_mov_b32 {v(vOnes+i)}, {ONES}")
    for i in range(2):
        a(f"v_mov_b32 {v(vS1+i)}, 0"); a(f"v_mov_b32 {v(vS2+i)}, 0")
    def read_set(st, kp):
        for t in range(3):
            for rd in range(2):
                a(f"ds_read_b64_tr_b16 {v(fA[st]+4*t+2*rd,2)}, {v(vA+t)} offset:{kp*12288+rd*1536}")
        for lt in range(2):
            a(f"ds_read_b128 {v(fB[st]+4*lt,4)}, {v(vB1 if kp else vB0)} offset:{lt*2048}")
    def set_addrs(slot_sgpr):
        for t in range(3):
            a(f"v_add_u32 {v(vA+t)}, {slot_sgpr}, {v(vAb+t)}")
        a(f"v_add_u32 {v(vB0)}, {slot_sgpr}, {v(vBb)}")
        a(f"v_add_u32 {v(vB1)}, {slot_sgpr}, {v(vBb+1)}")
    def mfmas(st, kp):
        for t in range(3):
            for lt in range(2):
                d = vAcc + (t*2+lt)*4
                a(f"v_mfma_f32_16x16x32_bf16 {v(d,4)}, {v(fA[st]+4*t,4)}, {v(fB[st]+4*lt,4)}, {v(d,4)}")
        skip = a.lab("A_nocs")
        a(f"s_cmp_lg_u32 {s(sLH)}, {kp}")
        a(f"s_cbranch_scc1 {skip}")
        for t in range(3):
            d = vCS + 4*t
            a(f"v_mfma_f32_16x16x32_bf16 {v(d,4)}, {v(fA[st]+4*t,4)}, {v(vOnes,4)}, {v(d,4)}")
        a(f"{skip}:")
        skip = a.lab("A_nost")
        a(f"s_cmp_lg_u32 {s(sStM)}, {s(sFQ)}")
        a(f"s_cbranch_scc1 {skip}")
        for r in range(4):
            for lt in range(2):
                a(f"v_dot2_f32_bf16 {v(vS1+lt)}, {v(fB[st]+4*lt+r)}, {v(vOnes)}, {v(vS1+lt)}")
            for lt in range(2):
                a(f"v_dot2_f32_bf16 {v(vS2+lt)}, {v(fB[st]+4*lt+r)}, {v(fB[st]+4*lt+r)}, {v(vS2+lt)}")
        a(f"{skip}:")
    sStage = S.alloc(); sStM = S.alloc(); sSlotN = S.alloc()
    a(f"s_mov_b32 {s(sStage)}, 0")
    a(f"s_mov_b32 {s(sSlotN)}, 0")
    set_addrs(s(sSlotN))
    ST.stamp()
    a("s_waitcnt vmcnt(8)")
    a("s_barrier")
    ST.stamp()
    read_set(0, 0)
    loop = a.lab("A_loop")
    a(f"{loop}:")
    a("s_waitcnt vmcnt(4)")
    a("s_barrier")
    a(f"s_cmp_ge_u32 {s(sStage)}, {NST-3}")
    a(f"s_cselect_b32 {s(sSoW)}, 0x40000000, {s(sSoW)}")
    a(f"s_cselect_b32 {s(sSoX)}, 0x40000000, {s(sSoX)}")
    dma_stage()
    a(f"s_and_b32 {s(sStM)}, {s(sStage)}, 3")
    read_set(1, 1)
    a("s_waitcnt lgkmcnt(8)")
    mfmas(0, 0)
    a(f"s_add_u32 {s(sSlotN)}, {s(sSlotN)}, {SLOT}")
    a(f"s_and_b32 {s(sSlotN)}, {s(sSlotN)}, {4*SLOT-1}")
    set_addrs(s(sSlotN))
    read_set(0, 0)
    a("s_waitcnt lgkmcnt(8)")
    mfmas(1, 1)
    a(f"s_add_u32 {s(sStage)}, {s(sStage)}, 1")
    a(f"s_cmp_lt_u32 {s(sStage)}, {NST}")
    a(f"s_cbranch_scc1 {loop}")
    a("s_waitcnt lgkmcnt(0)")
    ST.stamp()
    a("s_nop 7")
    def xreduce(r):
        a(f"v_mov_b32 {v(vT)}, {v(r)}")
        a("s_nop 1")
        a(f"v_permlane16_swap_b32 {v(r)}, {v(vT)}")
        a("s_nop 1")
        a(f"v_add_f32 {v(r)}, {v(r)}, {v(vT)}")
        a(f"v_mov_b32 {v(vT)}, {v(r)}")
        a("s_nop 1")
        a(f"v_permlane32_swap_b32 {v(r)}, {v(vT)}")
        a("s_nop 1")
        a(f"v_add_f32 {v(r)}, {v(r)}, {v(vT)}")
    for lt in range(2):
        xreduce(vS1+lt); xreduce(vS2+lt)
    vP = V.alloc(2, 2); vAd = V.alloc(); vAd2 = V.alloc()
    a(f"s_lshl_b32 {s(sT)}, {s(sLH)}, 10")
    a(f"s_add_u32 {s(sT)}, {s(sT)}, {STATP}")
    a(f"v_lshlrev_b32 {v(vAd)}, 5, {v(vI)}")
    a(f"v_add_u32 {v(vAd)}, {s(sT)}, {v(vAd)}")
    a(f"s_lshl_b32 {s(sT)}, {s(sFQ)}, 3")
    a(f"v_add_u32 {v(vAd2)}, {s(sT)}, {v(vAd)}")
    sEx = S.alloc(2, 2)
    a(f"s_mov_b64 {s(sEx,2)}, exec")
    a(f"s_mov_b64 exec, 0xffff")
    for lt in range(2):
        a(f"v_mov_b32 {v(vP)}, {v(vS1+lt)}")
        a(f"v_mov_b32 {v(vP+1)}, {v(vS2+lt)}")
        a(f"ds_write_b64 {v(vAd2)}, {v(vP,2)} offset:{lt*512}")
    a(f"s_mov_b64 exec, {s(sEx,2)}")
    vCa = V.alloc(); vCb = V.alloc()
    a(f"s_lshl_b32 {s(sT)}, {s(sFQ)}, 1")
    a(f"s_add_u32 {s(sT2)}, {s(sT)}, {s(sLH)}")
    a(f"s_mul_i32 {s(sT2)}, {s(sT2)}, 192")
    a(f"s_add_u32 {s(sT2)}, {s(sT2)}, {CSX}")
    a(f"v_lshlrev_b32 {v(vT)}, 4, {v(vGq)}")
    a(f"v_add_u32 {v(vCa)}, {s(sT2)}, {v(vT)}")
    a(f"s_xor_b32 {s(sT2)}, {s(sLH)}, 1")
    a(f"s_add_u32 {s(sT2)}, {s(sT2)}, {s(sT)}")
    a(f"s_mul_i32 {s(sT2)}, {s(sT2)}, 192")
    a(f"s_add_u32 {s(sT2)}, {s(sT2)}, {CSX}")
    a(f"v_add_u32 {v(vCb)}, {s(sT2)}, {v(vT)}")
    a(f"s_mov_b32 exec_lo, 0x00010001")
    a(f"s_mov_b32 exec_hi, 0x00010001")
    for t in range(3):
        a(f"ds_write_b128 {v(vCa)}, {v(vCS+4*t,4)} offset:{64*t}")
    a(f"s_mov_b64 exec, {s(sEx,2)}")
    a("s_waitcnt lgkmcnt(0)")
    a("s_barrier")
    vPs = V.alloc(16, 4); vCp = V.alloc(12, 4)
    for lt in range(2):
        a(f"ds_read_b128 {v(vPs+8*lt,4)}, {v(vAd)} offset:{lt*512}")
        a(f"ds_read_b128 {v(vPs+8*lt+4,4)}, {v(vAd)} offset:{lt*512+16}")
    for t in range(3):
        a(f"ds_read_b128 {v(vCp+4*t,4)}, {v(vCb)} offset:{64*t}")
    a("s_waitcnt lgkmcnt(0)")
    for i in range(12):
        a(f"v_add_f32 {v(vCS+i)}, {v(vCS+i)}, {v(vCp+i)}")
    vNM = V.alloc(2); vR = V.alloc(2)
    def bfround(r):
        a(f"v_cvt_pk_bf16_f32 {v(r)}, {v(r)}, {v(r)}")
        a(f"v_and_b32 {v(r)}, 0xffff0000, {v(r)}")
    for lt in range(2):
        p = vPs + 8*lt
        a(f"v_add_f32 {v(p)}, {v(p)}, {v(p+2)}")
        a(f"v_add_f32 {v(p+1)}, {v(p+1)}, {v(p+3)}")
        a(f"v_add_f32 {v(p+4)}, {v(p+4)}, {v(p+6)}")
        a(f"v_add_f32 {v(p+5)}, {v(p+5)}, {v(p+7)}")
        a(f"v_add_f32 {v(p)}, {v(p)}, {v(p+4)}")
        a(f"v_add_f32 {v(p+1)}, {v(p+1)}, {v(p+5)}")
        a(f"v_mul_f32 {v(p)}, 0x3b000000, {v(p)}")
        a(f"v_mul_f32 {v(p+1)}, 0x3b000000, {v(p+1)}")
        a(f"v_fma_f32 {v(p+1)}, -{v(p)}, {v(p)}, {v(p+1)}")
        a(f"v_max_f32 {v(p+1)}, 0, {v(p+1)}")
        bfround(p); bfround(p+1)
        a(f"v_add_f32 {v(p+1)}, 0x3727c5ac, {v(p+1)}")
        bfround(p+1)
        a(f"v_sqrt_f32 {v(p+1)}, {v(p+1)}")
        a("s_nop 0")
        bfround(p+1)
        a(f"v_rcp_f32 {v(vR+lt)}, {v(p+1)}")
        a(f"v_sub_f32 {v(vNM+lt)}, 0, {v(p)}")
    skip = a.lab("A_nors")
    a(f"s_cmp_lg_u32 {s(sFQ)}, 0")
    a(f"s_cbranch_scc1 {skip}")
    a(f"s_lshl_b32 {s(sT)}, {s(sLH)}, 7")
    a(f"s_add_u32 {s(sT)}, {s(sT)}, {RS}")
    a(f"v_lshlrev_b32 {v(vT)}, 2, {v(vI)}")
    a(f"v_add_u32 {v(vT)}, {s(sT)}, {v(vT)}")
    a(f"s_mov_b64 exec, 0xffff")
    for lt in range(2):
        a(f"v_mul_f32 {v(vT2)}, {v(vNM+lt)}, {v(vR+lt)}")
        a(f"ds_write_b32 {v(vT)}, {v(vR+lt)} offset:{lt*64}")
        a(f"ds_write_b32 {v(vT)}, {v(vT2)} offset:{256+lt*64}")
    a(f"s_mov_b64 exec, {s(sEx,2)}")
    a(f"{skip}:")
    a("s_waitcnt lgkmcnt(0)")
    a("s_barrier")
    vXr = V.alloc(4, 4); vRs = V.alloc(8, 4); vMr = V.alloc(8, 4)
    a(f"v_lshlrev_b32 {v(vT)}, 3, {v(vGq)}")
    a(f"s_lshl_b32 {s(sT)}, {s(sLH)}, 5")
    a(f"v_add_u32 {v(vT)}, {s(sT)}, {v(vT)}")
    a(f"v_lshrrev_b32 {v(vT2)}, 2, {v(vI)}")
    a(f"v_add_u32 {v(vT2)}, {v(vT2)}, {v(vT)}")
    a(f"v_lshlrev_b32 {v(vT2)}, 7, {v(vT2)}")
    a(f"v_and_b32 {v(vT3)}, 3, {v(vI)}")
    a(f"v_lshlrev_b32 {v(vT3)}, 3, {v(vT3)}")
    a(f"v_add_u32 {v(vT2)}, {v(vT2)}, {v(vT3)}")
    a(f"s_lshl_b32 {s(sT)}, {s(sFQ)}, 5")
    a(f"s_add_u32 {s(sT)}, {s(sT)}, {SLICE}")
    a(f"v_add_u32 {v(vT2)}, {s(sT)}, {v(vT2)}")
    a(f"ds_read_b64_tr_b16 {v(vXr,2)}, {v(vT2)}")
    a(f"ds_read_b64_tr_b16 {v(vXr+2,2)}, {v(vT2)} offset:512")
    a(f"v_lshlrev_b32 {v(vT3)}, 2, {v(vT)}")
    a(f"v_add_u32 {v(vT3)}, {RS}, {v(vT3)}")
    a(f"ds_read_b128 {v(vRs,4)}, {v(vT3)}")
    a(f"ds_read_b128 {v(vRs+4,4)}, {v(vT3)} offset:16")
    a(f"ds_read_b128 {v(vMr,4)}, {v(vT3)} offset:256")
    a(f"ds_read_b128 {v(vMr+4,4)}, {v(vT3)} offset:272")
    a(f"s_lshl_b32 {s(sT)}, {s(sJ)}, 6")
    a(f"s_lshl_b32 {s(sT2)}, {s(sFQ)}, 4")
    a(f"s_add_u32 {s(sT)}, {s(sT)}, {s(sT2)}")
    a(f"v_add_u32 {v(vT2)}, {s(sT)}, {v(vI)}")
    a(f"v_lshlrev_b32 {v(vT2)}, 12, {v(vT2)}")
    a(f"s_lshl_b32 {s(sT)}, {s(sG)}, 7")
    a(f"v_lshlrev_b32 {v(vT)}, 1, {v(vT)}")
    a(f"v_add3_u32 {v(vT2)}, {v(vT2)}, {v(vT)}, {s(sT)}")
    a("s_waitcnt lgkmcnt(0)")
    vE = V.alloc(8, 4)
    for i in range(4):
        a(f"v_lshlrev_b32 {v(vE+2*i)}, 16, {v(vXr+i)}")
        a(f"v_and_b32 {v(vE+2*i+1)}, 0xffff0000, {v(vXr+i)}")
    for i in range(8):
        a(f"v_fma_f32 {v(vE+i)}, {v(vE+i)}, {v(vRs+i)}, {v(vMr+i)}")
    for i in range(4):
        a(f"v_cvt_pk_bf16_f32 {v(vXr+i)}, {v(vE+2*i)}, {v(vE+2*i+1)}")
    a(f"buffer_store_dwordx4 {v(vXr,4)}, {v(vT2)}, {s(rXT,4)}, 0 offen")
    ST.stamp()
    vBf = V.alloc(4, 4); vH = V.alloc(4, 4); vN = V.alloc(4, 4); vQ = V.alloc(4, 4); vPk = V.alloc(4, 2)
    vSt = V.alloc()
    a(f"s_lshl_b32 {s(sT)}, {s(sTb)}, 11")
    a(f"s_lshl_b32 {s(sT2)}, {s(sLH)}, 8")
    a(f"s_add_u32 {s(sT)}, {s(sT)}, {s(sT2)}")
    a(f"v_lshlrev_b32 {v(vT)}, 9, {v(vGq)}")
    a(f"v_lshlrev_b32 {v(vT2)}, 3, {v(vI)}")
    a(f"v_add3_u32 {v(vSt)}, {v(vT)}, {v(vT2)}, {s(sT)}")
    sLim = S.alloc()
    a(f"s_add_u32 {s(sLim)}, {s(sT0)}, {s(sNT)}")
    for t in range(3):
        skip = a.lab("A_notile")
        a(f"s_add_u32 {s(sT)}, {s(sTb)}, {t}")
        a(f"s_cmp_ge_u32 {s(sT)}, {s(sLim)}")
        a(f"s_cbranch_scc1 {skip}")
        a(f"s_mov_b32 {s(sT2)}, {t*2048}")
        a(f"v_lshlrev_b32 {v(vBf)}, 16, {v(vBias+2*t)}")
        a(f"v_and_b32 {v(vBf+1)}, 0xffff0000, {v(vBias+2*t)}")
        a(f"v_lshlrev_b32 {v(vBf+2)}, 16, {v(vBias+2*t+1)}")
        a(f"v_and_b32 {v(vBf+3)}, 0xffff0000, {v(vBias+2*t+1)}")
        for lt in range(2):
            d = vAcc + (t*2+lt)*4
            for r in range(4): a(f"v_fma_f32 {v(vH+r)}, {v(vNM+lt)}, {v(vCS+4*t+r)}, {v(d+r)}")
            for r in range(4): a(f"v_fma_f32 {v(vH+r)}, {v(vH+r)}, {v(vR+lt)}, {v(vBf+r)}")
            for r in range(4): a(f"v_mul_f32 {v(vN+r)}, {LOG2E}, {v(vH+r)}")
            for r in range(4): a(f"v_exp_f32 {v(vN+r)}, {v(vN+r)}")
            for r in range(4): a(f"v_add_f32_e64 {v(vQ+r)}, {v(vN+r)}, 2.0")
            for r in range(4): a(f"v_fma_f32 {v(vQ+r)}, {v(vN+r)}, {v(vQ+r)}, 2.0")
            for r in range(4): a(f"v_rcp_f32 {v(vQ+r)}, {v(vQ+r)}")
            for r in range(4): a(f"v_fma_f32 {v(vQ+r)}, {v(vQ+r)}, -2.0, 1.0")
            for r in range(4): a(f"v_mul_f32_e64 {v(vH+r)}, {v(vH+r)}, {v(vQ+r)}")
            a(f"v_cvt_pk_bf16_f32 {v(vPk+2*lt)}, {v(vH)}, {v(vH+1)}")
            a(f"v_cvt_pk_bf16_f32 {v(vPk+2*lt+1)}, {v(vH+2)}, {v(vH+3)}")
            a(f"buffer_store_dwordx2 {v(vPk+2*lt,2)}, {v(vSt)}, {s(rACT,4)}, {s(sT2)} offen offset:{lt*128}")
        a(f"{skip}:")
    ST.stamp()
    a("s_waitcnt vmcnt(0)")
    ST.stamp()
    ST.flush(pWS, vT, vT2, sT, rXT)
    a("s_waitcnt vmcnt(0)")
    a(f"{end}:")
    a("s_endpgm")
    return dict(vgpr=V.hi, lds=LDS)
```

```python
from common import *
LOG2E = 0x3fb8aa3b
INV2PI = 0x3e22f983

def cmul(a, d, x, w, t):
    a(f"v_pk_mul_f32 {v(t,2)}, {v(x,2)}, {v(w,2)} op_sel:[1,1] op_sel_hi:[1,0] neg_lo:[1,0]")
    a(f"v_pk_fma_f32 {v(d,2)}, {v(x,2)}, {v(w,2)}, {v(t,2)} op_sel:[0,0,0] op_sel_hi:[0,1,1]")

def gen_kB(a, name, dbg_stamp=False):
    FSTR = 528
    FCH = 64 * FSTR
    FAC = 0
    TAB = 2 * FCH
    TCH = 2880
    CSTR = 4416
    KCH = 4 * CSTR
    KB = TAB + 2 * TCH
    KB = (KB + 255) // 256 * 256
    UCH = 48 * 144
    UB = KB + 2 * KCH
    LDS = UB + 2 * UCH
    PSL = 4096
    V = Regs('v', 1, 256); S = Regs('s', 4, 100)
    end = a.lab("B_end")
    kernel_begin(a, name)
    a("s_cmp_ge_u32 s2, 256")
    a(f"s_cbranch_scc1 {end}")
    ST = Stamps(a, S, dbg_stamp); ST.start()
    pLA = S.alloc(2, 2); pAI = S.alloc(2, 2); pCR = S.alloc(2, 2); pCI = S.alloc(2, 2); pDT = S.alloc(2, 2); pDS = S.alloc(2, 2); pWS = S.alloc(2, 2)
    for p, k in [(pLA, 'logA'), (pAI, 'Aim'), (pCR, 'Cre'), (pCI, 'Cim'), (pDT, 'logdt'), (pDS, 'Dskip'), (pWS, 'ws')]:
        a(f"s_load_dwordx2 {s(p,2)}, s[0:1], {KA[k]}")
    rP = S.alloc(4, 4); rXT = S.alloc(4, 4); rST = S.alloc(4, 4)
    sW = S.alloc(); sCH = S.alloc(); sCI = S.alloc(); sRW = S.alloc(); sVP = S.alloc(); sHH = S.alloc()
    sT = S.alloc(); sT2 = S.alloc(); sDT = S.alloc(); sDS = S.alloc()
    vLane = V.alloc(); vT = V.alloc(); vT2 = V.alloc(); vT3 = V.alloc(); vI = V.alloc(); vG = V.alloc()
    a(f"v_lshrrev_b32 {v(vT)}, 6, v0")
    a(f"v_and_b32 {v(vLane)}, 63, v0")
    a(f"v_readfirstlane_b32 {s(sW)}, {v(vT)}")
    a(f"v_and_b32 {v(vI)}, 15, {v(vLane)}")
    a(f"v_lshrrev_b32 {v(vG)}, 4, {v(vLane)}")
    a(f"s_lshr_b32 {s(sCI)}, {s(sW)}, 2")
    a(f"s_and_b32 {s(sRW)}, {s(sW)}, 3")
    a(f"s_and_b32 {s(sVP)}, {s(sW)}, 1")
    a(f"s_bfe_u32 {s(sHH)}, {s(sW)}, 0x10001")
    a(f"s_lshl_b32 {s(sCH)}, s2, 1")
    a(f"s_add_u32 {s(sCH)}, {s(sCH)}, {s(sCI)}")
    a("s_waitcnt lgkmcnt(0)")
    a(f"s_lshl_b32 {s(sT)}, s2, 2")
    a(f"s_load_dword {s(sDT)}, {s(pDT,2)}, {s(sT)}")
    a(f"s_load_dword {s(sDS)}, {s(pDS,2)}, {s(sT)}")
    srd(a, rXT, pWS, 512 * 4096, off=WS_XNT)
    srd(a, rST, pWS, 512 * 4096, off=WS_ST)
    vU = V.alloc(4, 4); vChi = V.alloc()
    a(f"s_lshl_b32 {s(sT)}, {s(sRW)}, 6")
    a(f"v_add_u32 {v(vChi)}, {s(sT)}, {v(vLane)}")
    a(f"v_lshlrev_b32 {v(vT)}, 4, {v(vChi)}")
    a(f"s_lshl_b32 {s(sT)}, {s(sCH)}, 12")
    a(f"buffer_load_dwordx4 {v(vU,4)}, {v(vT)}, {s(rXT,4)}, {s(sT)} offen")
    vLA = V.alloc(); vAI = V.alloc(); vC = V.alloc(2, 2)
    a(f"s_lshl_b32 {s(sT)}, {s(sVP)}, 6")
    a(f"v_add_u32 {v(vT)}, {s(sT)}, {v(vLane)}")
    a(f"v_lshlrev_b32 {v(vT2)}, 1, {v(vT)}")
    a(f"s_lshl_b32 {s(sT)}, {s(sCH)}, 8")
    for dst, p in [(vLA, pLA), (vAI, pAI), (vC, pCR), (vC+1, pCI)]:
        srd(a, rP, p, 512 * 128 * 2)
        a(f"buffer_load_ushort {v(dst)}, {v(vT2)}, {s(rP,4)}, {s(sT)} offen")
    vFw = V.alloc()
    a(f"s_mul_i32 {s(sT2)}, {s(sCI)}, {FCH}")
    a(f"v_lshl_add_u32 {v(vFw)}, {v(vT)}, 2, {s(sT2)}")
    vZ = V.alloc(4, 4)
    for i in range(4): a(f"v_mov_b32 {v(vZ+i)}, 0")
    a(f"s_mul_i32 {s(sT2)}, {s(sCI)}, {UCH}")
    a(f"s_add_u32 {s(sT2)}, {s(sT2)}, {UB}")
    a(f"v_lshl_add_u32 {v(vT)}, {v(vChi)}, 4, {s(sT2)}")
    a(f"v_cmp_gt_u32 vcc, 144, {v(vChi)}")
    sEx = S.alloc(2, 2)
    a(f"s_and_saveexec_b64 {s(sEx,2)}, vcc")
    a(f"ds_write_b128 {v(vT)}, {v(vZ,4)}")
    a(f"s_mov_b64 exec, {s(sEx,2)}")
    a(f"s_mul_i32 {s(sT2)}, {s(sCI)}, {KCH}")
    a(f"s_add_u32 {s(sT2)}, {s(sT2)}, {KB + 4096}")
    a(f"v_lshrrev_b32 {v(vT)}, 3, {v(vChi)}")
    a(f"v_mul_u32_u24 {v(vT)}, {CSTR}, {v(vT)}")
    a(f"v_and_b32 {v(vT2)}, 7, {v(vChi)}")
    a(f"v_lshl_add_u32 {v(vT)}, {v(vT2)}, 4, {v(vT)}")
    a(f"v_add_u32 {v(vT)}, {s(sT2)}, {v(vT)}")
    a(f"v_cmp_gt_u32 vcc, 32, {v(vChi)}")
    a(f"s_and_saveexec_b64 {s(sEx,2)}, vcc")
    a(f"ds_write_b128 {v(vT)}, {v(vZ,4)}")
    a(f"s_mov_b64 exec, {s(sEx,2)}")
    sTab = S.alloc()
    a(f"s_mul_i32 {s(sTab)}, {s(sCI)}, {TCH}")
    a(f"s_add_u32 {s(sTab)}, {s(sTab)}, {TAB}")
    a(f"s_add_u32 {s(sT2)}, {s(sTab)}, {2*1410}")
    a(f"v_mov_b32 {v(vT)}, {s(sT2)}")
    a(f"ds_write_b16 {v(vT)}, {v(vZ)}")
    a("s_waitcnt lgkmcnt(0)")
    def bfround(r):
        a(f"v_cvt_pk_bf16_f32 {v(r)}, {v(r)}, {v(r)}")
        a(f"v_and_b32 {v(r)}, 0xffff0000, {v(r)}")
    vDt = V.alloc(); vAl = V.alloc(); vBe = V.alloc(); vDsk = V.alloc()
    a(f"s_cmp_eq_u32 {s(sCI)}, 0")
    a(f"s_cselect_b32 {s(sT)}, 16, 0")
    a(f"s_lshl_b32 {s(sDT)}, {s(sDT)}, {s(sT)}")
    a(f"s_and_b32 {s(sDT)}, {s(sDT)}, 0xffff0000")
    a(f"s_lshl_b32 {s(sDS)}, {s(sDS)}, {s(sT)}")
    a(f"s_and_b32 {s(sDS)}, {s(sDS)}, 0xffff0000")
    a(f"v_mov_b32 {v(vDsk)}, {s(sDS)}")
    a(f"v_mov_b32 {v(vDt)}, {s(sDT)}")
    a(f"v_mul_f32 {v(vDt)}, {LOG2E}, {v(vDt)}")
    a(f"v_exp_f32 {v(vDt)}, {v(vDt)}")
    a("s_nop 0")
    bfround(vDt)
    a("s_waitcnt vmcnt(0)")
    a(f"v_lshrrev_b32 {v(vT)}, 3, {v(vChi)}")
    a(f"v_mul_u32_u24 {v(vT)}, 144, {v(vT)}")
    a(f"v_and_b32 {v(vT2)}, 7, {v(vChi)}")
    a(f"v_lshl_add_u32 {v(vT)}, {v(vT2)}, 4, {v(vT)}")
    sUB = S.alloc()
    a(f"s_mul_i32 {s(sUB)}, {s(sCI)}, {UCH}")
    a(f"s_add_u32 {s(sUB)}, {s(sUB)}, {UB}")
    a(f"s_add_u32 {s(sT2)}, {s(sUB)}, {16*144}")
    a(f"v_add_u32 {v(vT)}, {s(sT2)}, {v(vT)}")
    a(f"ds_write_b128 {v(vT)}, {v(vU,4)}")
    a(f"v_lshlrev_b32 {v(vLA)}, 16, {v(vLA)}")
    a(f"v_lshlrev_b32 {v(vAI)}, 16, {v(vAI)}")
    a(f"v_lshlrev_b32 {v(vC)}, 16, {v(vC)}")
    a(f"v_lshlrev_b32 {v(vC+1)}, 16, {v(vC+1)}")
    a(f"v_mul_f32 {v(vLA)}, {LOG2E}, {v(vLA)}")
    a(f"v_exp_f32 {v(vLA)}, {v(vLA)}")
    a(f"v_mul_f32 {v(vBe)}, {v(vAI)}, {v(vDt)}")
    bfround(vLA)
    a(f"v_mul_f32 {v(vAl)}, {v(vLA)}, {v(vDt)}")
    a(f"v_mul_f32 {v(vAl)}, 0xbfb8aa3b, {v(vAl)}")
    a(f"v_mul_f32 {v(vBe)}, {INV2PI}, {v(vBe)}")
    a(f"v_add_f32 {v(vT)}, {v(vDt)}, {v(vDt)}")
    a(f"v_mul_f32 {v(vC)}, {v(vC)}, {v(vT)}")
    a(f"v_mul_f32 {v(vC+1)}, {v(vC+1)}, {v(vT)}")
    def evalE(d, p):
        lit = hex(int.from_bytes(__import__('struct').pack('<f', float(p)), 'little'))
        a(f"v_mul_f32 {v(vT)}, {lit}, {v(vAl)}")
        a(f"v_mul_f32 {v(vT2)}, {lit}, {v(vBe)}")
        a(f"v_exp_f32 {v(vT)}, {v(vT)}")
        a(f"v_fract_f32 {v(vT2)}, {v(vT2)}")
        a("s_nop 0")
        a(f"v_cos_f32 {v(d)}, {v(vT2)}")
        a(f"v_sin_f32 {v(d+1)}, {v(vT2)}")
        a("s_nop 0")
        a(f"v_mul_f32 {v(d)}, {v(d)}, {v(vT)}")
        a(f"v_mul_f32 {v(d+1)}, {v(d+1)}, {v(vT)}")
    vPk = V.alloc(2)
    pkc = [0]
    def putrow(row, x, neg):
        r = vPk + (pkc[0] & 1); pkc[0] += 1
        a(f"v_cvt_pk_bf16_f32 {v(r)}, {v(x)}, {'-' if neg else ''}{v(x+1)}")
        a(f"ds_write_b32 {v(vFw)}, {v(r)} offset:{row*FSTR}")
    m = V.mark()
    wA = V.alloc(2, 2); wB = V.alloc(2, 2); wC = V.alloc(2, 2); tmp = V.alloc(2, 2); x0 = V.alloc(2, 2); x1 = V.alloc(2, 2)
    cj = V.alloc(16, 2)
    labH1 = a.lab("B_h1"); labJ = a.lab("B_gen_done")
    a(f"s_cmp_eq_u32 {s(sHH)}, 1")
    a(f"s_cbranch_scc1 {labH1}")
    evalE(wA, 8); evalE(wB, 128); evalE(wC, 1024)
    a(f"v_mov_b32 {v(x0)}, 1.0"); a(f"v_mov_b32 {v(x0+1)}, 0")
    putrow(48, x0, False)
    putrow(49, wA, False)
    cmul(a, x1, wA, wA, tmp)
    a(f"v_mov_b32 {v(cj)}, {v(x1)}"); a(f"v_mov_b32 {v(cj+1)}, {v(x1+1)}")
    a(f"v_mov_b32 {v(x0)}, {v(x1)}"); a(f"v_mov_b32 {v(x0+1)}, {v(x1+1)}")
    a(f"v_mov_b32 {v(x1)}, {v(wA)}"); a(f"v_mov_b32 {v(x1+1)}, {v(wA+1)}")
    t2 = cj + 2
    putrow(50, x0, False)
    for b in range(3, 16):
        x = x1 if b & 1 else x0
        cmul(a, x, x, cj, tmp if b & 1 else t2)
        putrow(48 + b, x, False)
    cmul(a, x0, vC, wC, tmp)
    putrow(32, x0, True)
    for r in range(1, 9):
        cmul(a, x0, x0, wB, tmp)
        putrow(32 + r, x0, True)
    a(f"s_branch {labJ}")
    a(f"{labH1}:")
    evalE(wA, 1); evalE(wB, 128)
    cmul(a, wC, wB, wB, tmp)
    a(f"v_mov_b32 {v(cj)}, {v(vC)}"); a(f"v_mov_b32 {v(cj+1)}, {v(vC+1)}")
    putrow(0, cj, True)
    for j in range(1, 8):
        cmul(a, cj + 2*j, cj + 2*(j-1), wA, tmp)
        putrow(j, cj + 2*j, True)
    for j in range(8):
        cmul(a, x0 if j & 1 else x1, cj + 2*j, wB, tmp if j & 1 else wA)
        putrow(8 + j, x0 if j & 1 else x1, True)
    for k, j in enumerate([0, 2, 4, 6]):
        x = x0 if k & 1 else x1
        cmul(a, x, cj + 2*j, wC, tmp)
        putrow(16 + k, x, True)
        cmul(a, x, x, wB, tmp)
        putrow(20 + k, x, True)
    cmul(a, wC, wC, wC, tmp)
    cmul(a, x0, cj, wC, tmp)
    cmul(a, x1, cj + 8, wC, wA)
    putrow(24, x0, True); putrow(25, x1, True)
    for k in range(1, 4):
        cmul(a, x0, x0, wB, tmp); cmul(a, x1, x1, wB, wA)
        putrow(24 + 2*k, x0, True); putrow(25 + 2*k, x1, True)
    a(f"{labJ}:")
    V.release(m)
    ST.stamp()
    a("s_waitcnt lgkmcnt(0)")
    a("s_barrier")
    m = V.mark()
    fa = V.alloc(32, 4); fb = V.alloc(32, 4); dK = V.alloc(4, 4); vQ = V.alloc(4)
    labNoT = a.lab("B_notile")
    a(f"s_cmp_eq_u32 {s(sRW)}, 3")
    a(f"s_cbranch_scc1 {labNoT}")
    a(f"s_mul_i32 {s(sT)}, {s(sCI)}, {FCH}")
    a(f"v_mul_u32_u24 {v(vT)}, {FSTR}, {v(vI)}")
    a(f"v_lshl_add_u32 {v(vT)}, {v(vG)}, 4, {v(vT)}")
    a(f"v_add_u32 {v(vT)}, {s(sT)}, {v(vT)}")
    a(f"s_mul_i32 {s(sT2)}, {s(sRW)}, {16*FSTR}")
    a(f"v_add_u32 {v(vT2)}, {s(sT2)}, {v(vT)}")
    for k in range(8):
        a(f"ds_read_b128 {v(fa+4*k,4)}, {v(vT2)} offset:{64*k}")
        a(f"ds_read_b128 {v(fb+4*k,4)}, {v(vT)} offset:{48*FSTR+64*k}")
    for i in range(4): a(f"v_mov_b32 {v(dK+i)}, 0")
    b8 = vT3
    a(f"v_lshlrev_b32 {v(b8)}, 3, {v(vI)}")
    l1 = a.lab("B_t1"); l2 = a.lab("B_t2"); lj = a.lab("B_tj")
    a(f"s_cmp_eq_u32 {s(sRW)}, 1"); a(f"s_cbranch_scc1 {l1}")
    a(f"s_cmp_eq_u32 {s(sRW)}, 2"); a(f"s_cbranch_scc1 {l2}")
    a(f"v_and_b32 {v(vT)}, 1, {v(vG)}"); a(f"v_lshlrev_b32 {v(vT)}, 2, {v(vT)}")
    a(f"v_lshrrev_b32 {v(vT2)}, 1, {v(vG)}"); a(f"v_lshl_add_u32 {v(vT)}, {v(vT2)}, 7, {v(vT)}")
    a(f"v_add_u32 {v(vQ)}, {v(vT)}, {v(b8)}")
    for r in range(1, 4): a(f"v_add_u32 {v(vQ+r)}, {r}, {v(vQ)}")
    a(f"s_branch {lj}")
    a(f"{l1}:")
    a(f"v_lshlrev_b32 {v(vT)}, 7, {v(vG)}"); a(f"v_add_u32 {v(vT)}, 256, {v(vT)}")
    a(f"v_lshlrev_b32 {v(vT2)}, 8, {v(vG)}")
    a(f"v_cmp_gt_u32 vcc, 2, {v(vG)}")
    a("s_nop 1")
    a(f"v_cndmask_b32 {v(vT)}, {v(vT2)}, {v(vT)}, vcc")
    a(f"v_add_u32 {v(vQ)}, {v(vT)}, {v(b8)}")
    for r, (lo, hi) in enumerate([(2, 4), (4, 128), (6, 132)], start=1):
        a(f"v_mov_b32 {v(vT)}, {hi}")
        a(f"v_mov_b32 {v(vT2)}, {lo}")
        a(f"v_cndmask_b32 {v(vT)}, {v(vT)}, {v(vT2)}, vcc")
        a(f"v_add_u32 {v(vQ+r)}, {v(vT)}, {v(vQ)}")
    a(f"s_branch {lj}")
    a(f"{l2}:")
    a(f"v_lshlrev_b32 {v(vT)}, 9, {v(vG)}"); a(f"v_add_u32 {v(vT)}, 1024, {v(vT)}")
    a(f"v_add_u32 {v(vQ)}, {v(vT)}, {v(b8)}")
    for r in range(1, 4): a(f"v_add_u32 {v(vQ+r)}, {128*r}, {v(vQ)}")
    a(f"v_mov_b32 {v(vT)}, -1")
    a(f"v_cmp_gt_u32 vcc, 2, {v(vG)}")
    a("s_nop 1")
    for r in range(1, 4): a(f"v_cndmask_b32 {v(vQ+r)}, {v(vT)}, {v(vQ+r)}, vcc")
    a(f"v_cmp_ge_u32 vcc, 32, {v(vLane)}")
    a("s_nop 1")
    a(f"v_cndmask_b32 {v(vQ)}, {v(vT)}, {v(vQ)}, vcc")
    a(f"{lj}:")
    for r in range(4):
        a(f"v_cmp_gt_i32 vcc, 0, {v(vQ+r)}")
        a(f"v_cvt_f32_i32 {v(vQ+r)}, {v(vQ+r)}")
        a(f"v_lshrrev_b32 {v(vQ+r)}, 15, {v(vQ+r)}")
        a(f"v_subrev_u32 {v(vQ+r)}, 0x7efe, {v(vQ+r)}")
        a(f"v_max_i32 {v(vQ+r)}, 0, {v(vQ+r)}")
        a(f"v_mov_b32 {v(vT)}, {2*1411}")
        a(f"v_cndmask_b32 {v(vQ+r)}, {v(vQ+r)}, {v(vT)}, vcc")
        a(f"v_add_u32 {v(vQ+r)}, {s(sTab)}, {v(vQ+r)}")
    a("s_waitcnt lgkmcnt(0)")
    for k in range(8):
        a(f"v_mfma_f32_16x16x32_bf16 {v(dK,4)}, {v(fa+4*k,4)}, {v(fb+4*k,4)}, {v(dK,4)}")
    a("s_nop 7"); a("s_nop 1")
    a(f"v_cvt_pk_bf16_f32 {v(vT)}, {v(dK)}, {v(dK+1)}")
    a(f"v_cvt_pk_bf16_f32 {v(vT2)}, {v(dK+2)}, {v(dK+3)}")
    a(f"ds_write_b16 {v(vQ)}, {v(vT)}")
    a(f"ds_write_b16_d16_hi {v(vQ+1)}, {v(vT)}")
    a(f"ds_write_b16 {v(vQ+2)}, {v(vT2)}")
    a(f"ds_write_b16_d16_hi {v(vQ+3)}, {v(vT2)}")
    a(f"{labNoT}:")
    V.release(m)
    m = V.mark()
    vIx = V.alloc(12); vD = V.alloc(7, 2); vF = V.alloc(2)
    a(f"v_lshlrev_b32 {v(vT)}, 3, {v(vChi)}")
    a(f"v_sub_u32 {v(vT)}, 2047, {v(vT)}")
    a(f"v_cvt_f32_i32 {v(vT)}, {v(vT)}")
    sLo = S.alloc(); sHi = S.alloc(); sOf = S.alloc()
    a(f"s_mov_b32 {s(sLo)}, {s(sTab)}")
    a(f"s_add_u32 {s(sHi)}, {s(sTab)}, {2*1410}")
    a(f"s_sub_u32 {s(sOf)}, {s(sTab)}, 0x7efe")
    vHi = V.alloc(); vLo = V.alloc()
    a(f"v_mov_b32 {v(vHi)}, {s(sHi)}"); a(f"v_mov_b32 {v(vLo)}, {s(sLo)}")
    import struct
    fl = lambda x: hex(int.from_bytes(struct.pack('<f', float(x)), 'little'))
    for e in range(0, 12, 2):
        a(f"v_subrev_f32 {v(vF)}, {fl(e)}, {v(vT)}")
        a(f"v_subrev_f32 {v(vF+1)}, {fl(e+1)}, {v(vT)}")
        a(f"v_cvt_pk_bf16_f32 {v(vF)}, {v(vF)}, {v(vF+1)}")
        a(f"v_and_b32 {v(vIx+e)}, 0xffff, {v(vF)}")
        a(f"v_lshrrev_b32 {v(vIx+e+1)}, 16, {v(vF)}")
        for k in (e, e+1):
            a(f"v_lshl_add_u32 {v(vIx+k)}, {v(vIx+k)}, 1, {s(sOf)}")
            a(f"v_med3_i32 {v(vIx+k)}, {v(vIx+k)}, {v(vLo)}, {v(vHi)}")
    a("s_waitcnt lgkmcnt(0)")
    a("s_barrier")
    ST.stamp()
    d = vD + 1
    vHiT = V.alloc(5)
    for e in range(0, 11):
        if e % 2 == 0: a(f"ds_read_u16 {v(d + e//2)}, {v(vIx+e)}")
        else: a(f"ds_read_u16 {v(vHiT + e//2)}, {v(vIx+e)}")
    vW = V.alloc(12, 4)
    a(f"s_mul_i32 {s(sT)}, {s(sCI)}, {KCH}")
    a(f"s_add_u32 {s(sT)}, {s(sT)}, {KB}")
    sKB = S.alloc()
    a(f"s_mov_b32 {s(sKB)}, {s(sT)}")
    a(f"v_lshl_add_u32 {v(vT)}, {v(vChi)}, 4, {s(sT)}")
    a("s_waitcnt lgkmcnt(0)")
    for i in range(5): a(f"v_lshl_or_b32 {v(d+i)}, {v(vHiT+i)}, 16, {v(d+i)}")
    for i in range(4): a(f"v_mov_b32 {v(vW+i)}, {v(d+i)}")
    for i in range(4): a(f"v_alignbit_b32 {v(vW+4+i)}, {v(d+i+1)}, {v(d+i)}, 16")
    for i in range(4): a(f"v_alignbit_b32 {v(vW+8+i)}, {v(d+i+2)}, {v(d+i+1)}, 16")
    a(f"ds_write_b128 {v(vT)}, {v(vW,4)}")
    a(f"ds_write_b128 {v(vT)}, {v(vW+4,4)} offset:{CSTR}")
    a(f"ds_write_b128 {v(vT)}, {v(d+1,4)} offset:{2*CSTR}")
    a(f"ds_write_b128 {v(vT)}, {v(vW+8,4)} offset:{3*CSTR}")
    V.release(m)
    a("s_waitcnt lgkmcnt(0)")
    a("s_barrier")
    ST.stamp()
    vA0 = V.alloc(); vB0 = V.alloc(); vA = V.alloc(); vB = V.alloc()
    a(f"v_sub_u32 {v(vT)}, 3, {v(vI)}")
    a(f"v_and_b32 {v(vT)}, 3, {v(vT)}")
    a(f"v_mul_u32_u24 {v(vT2)}, {CSTR}, {v(vT)}")
    a(f"v_add_u32 {v(vT)}, {v(vT)}, {v(vI)}")
    a(f"v_lshlrev_b32 {v(vT3)}, 2, {v(vG)}")
    a(f"v_sub_u32 {v(vT)}, {v(vT3)}, {v(vT)}")
    a(f"v_add_u32 {v(vT)}, 2047, {v(vT)}")
    a(f"v_lshl_add_u32 {v(vT)}, {v(vT)}, 1, {v(vT2)}")
    a(f"v_add_u32 {v(vA0)}, {s(sKB)}, {v(vT)}")
    a(f"v_mul_u32_u24 {v(vT)}, 144, {v(vI)}")
    a(f"v_lshl_add_u32 {v(vT)}, {v(vG)}, 3, {v(vT)}")
    a(f"s_add_u32 {s(sT)}, {s(sUB)}, {16*144}")
    a(f"v_add_u32 {v(vB0)}, {s(sT)}, {v(vT)}")
    vAcc = V.alloc(16, 4)
    H = [V.alloc(14, 2), V.alloc(14, 2)]; G = [V.alloc(8, 4), V.alloc(8, 4)]
    sCT = S.alloc(); sS0 = S.alloc(); sN = S.alloc(); sSlot = S.alloc(); sSeg = S.alloc()
    a(f"s_mov_b32 {s(sCT)}, 1"); a(f"s_mul_i32 {s(sS0)}, {s(sRW)}, 12"); a(f"s_mov_b32 {s(sN)}, 6"); a(f"s_mov_b32 {s(sSlot)}, {s(sRW)}")
    a(f"s_mov_b32 {s(sSeg)}, 0")
    a(f"s_cmp_eq_u32 {s(sRW)}, 2")
    a(f"s_cselect_b32 {s(sN)}, 4, {s(sN)}")
    a(f"s_cselect_b32 {s(sSeg)}, 1, {s(sSeg)}")
    a(f"s_cmp_eq_u32 {s(sRW)}, 3")
    a(f"s_cselect_b32 {s(sCT)}, 0, {s(sCT)}")
    a(f"s_cselect_b32 {s(sS0)}, 4, {s(sS0)}")
    a(f"s_cselect_b32 {s(sSlot)}, 4, {s(sSlot)}")
    seg = a.lab("B_seg"); loop = a.lab("B_conv"); done = a.lab("B_segdone")
    def reads(st):
        for k in range(7):
            a(f"ds_read_b64 {v(H[st]+2*k,2)}, {v(vA)} offset:{32*k}")
        for q in range(2):
            for e in range(2):
                a(f"ds_read_b64 {v(G[st]+4*q+2*e,2)}, {v(vB)} offset:{64*q+32*e}")
        a(f"v_subrev_u32 {v(vA)}, 128, {v(vA)}")
        a(f"v_subrev_u32 {v(vB)}, 144, {v(vB)}")
    def mf(st):
        for q in range(2):
            for rho in range(4):
                k = 3 - rho + 2*q
                a(f"v_mfma_f32_16x16x32_bf16 {v(vAcc+4*rho,4)}, {v(H[st]+2*k,4)}, {v(G[st]+4*q,4)}, {v(vAcc+4*rho,4)}")
    a(f"{seg}:")
    a(f"s_lshl_b32 {s(sT)}, {s(sS0)}, 7")
    a(f"s_add_u32 {s(sT)}, {s(sT)}, 96")
    a(f"v_subrev_u32 {v(vA)}, {s(sT)}, {v(vA0)}")
    a(f"s_lshl_b32 {s(sT)}, {s(sCT)}, 4")
    a(f"s_sub_u32 {s(sT)}, {s(sT)}, {s(sS0)}")
    a(f"s_mul_i32 {s(sT)}, {s(sT)}, 144")
    a(f"v_add_u32 {v(vB)}, {s(sT)}, {v(vB0)}")
    for i in range(16): a(f"v_mov_b32 {v(vAcc+i)}, 0")
    reads(0)
    a(f"{loop}:")
    reads(1)
    a("s_waitcnt lgkmcnt(11)")
    mf(0)
    reads(0)
    a("s_waitcnt lgkmcnt(11)")
    mf(1)
    a(f"s_sub_u32 {s(sN)}, {s(sN)}, 1")
    a(f"s_cmp_lg_u32 {s(sN)}, 0")
    a(f"s_cbranch_scc1 {loop}")
    a("s_waitcnt lgkmcnt(0)")
    a(f"s_mul_i32 {s(sT)}, {s(sCI)}, {5*PSL}")
    a(f"s_lshl_b32 {s(sT2)}, {s(sSlot)}, 12")
    a(f"s_add_u32 {s(sT)}, {s(sT)}, {s(sT2)}")
    a(f"v_lshl_add_u32 {v(vT)}, {v(vLane)}, 4, {s(sT)}")
    a("s_nop 4")
    for rho in range(4):
        a(f"ds_write_b128 {v(vT)}, {v(vAcc+4*rho,4)} offset:{1024*rho}")
    a(f"s_cmp_eq_u32 {s(sSeg)}, 0")
    a(f"s_cbranch_scc1 {done}")
    a(f"s_mov_b32 {s(sSeg)}, 0"); a(f"s_mov_b32 {s(sCT)}, 0"); a(f"s_mov_b32 {s(sS0)}, 0"); a(f"s_mov_b32 {s(sN)}, 2"); a(f"s_mov_b32 {s(sSlot)}, 3")
    a("s_waitcnt lgkmcnt(0)")
    a(f"s_branch {seg}")
    a(f"{done}:")
    a("s_waitcnt lgkmcnt(0)")
    a("s_barrier")
    ST.stamp()
    vP = V.alloc(24, 4); vUu = V.alloc(4, 2); vY = V.alloc(8, 4); vE = V.alloc(8, 4)
    a(f"s_mul_i32 {s(sT)}, {s(sCI)}, {5*PSL}")
    a(f"s_and_b32 {s(sT2)}, {s(sRW)}, 1")
    a(f"s_lshl_b32 {s(sT2)}, {s(sT2)}, 11")
    a(f"s_add_u32 {s(sT)}, {s(sT)}, {s(sT2)}")
    a(f"s_cmp_ge_u32 {s(sRW)}, 2")
    a(f"s_cselect_b32 {s(sT2)}, {3*PSL}, 0")
    a(f"s_add_u32 {s(sT)}, {s(sT)}, {s(sT2)}")
    a(f"v_lshl_add_u32 {v(vT)}, {v(vLane)}, 4, {s(sT)}")
    for p in range(2):
        for rr in range(2):
            a(f"ds_read_b128 {v(vP+8*p+4*rr,4)}, {v(vT)} offset:{p*PSL+rr*1024}")
    lab0 = a.lab("B_two")
    for i in range(8): a(f"v_mov_b32 {v(vP+16+i)}, 0")
    a(f"s_cmp_ge_u32 {s(sRW)}, 2")
    a(f"s_cbranch_scc1 {lab0}")
    for rr in range(2):
        a(f"ds_read_b128 {v(vP+16+4*rr,4)}, {v(vT)} offset:{2*PSL+rr*1024}")
    a(f"{lab0}:")
    sCTf = S.alloc()
    a(f"s_cmp_ge_u32 {s(sRW)}, 2")
    a(f"s_cselect_b32 {s(sCTf)}, 0, 1")
    a(f"s_mul_i32 {s(sT)}, {s(sCTf)}, {16*144}")
    a(f"s_and_b32 {s(sT2)}, {s(sRW)}, 1")
    a(f"s_lshl_b32 {s(sT2)}, {s(sT2)}, 6")
    a(f"s_add_u32 {s(sT)}, {s(sT)}, {s(sT2)}")
    a(f"v_add_u32 {v(vT2)}, {s(sT)}, {v(vB0)}")
    for rr in range(2):
        a(f"ds_read_b64 {v(vUu+2*rr,2)}, {v(vT2)} offset:{32*rr}")
    a(f"s_lshl_b32 {s(sT)}, {s(sCTf)}, 11")
    a(f"s_and_b32 {s(sT2)}, {s(sRW)}, 1")
    a(f"s_lshl_b32 {s(sT2)}, {s(sT2)}, 6")
    a(f"s_add_u32 {s(sT)}, {s(sT)}, {s(sT2)}")
    a(f"v_lshlrev_b32 {v(vT3)}, 7, {v(vI)}")
    a(f"v_lshl_add_u32 {v(vT3)}, {v(vG)}, 3, {v(vT3)}")
    a(f"v_add_u32 {v(vT3)}, {s(sT)}, {v(vT3)}")
    a(f"s_lshl_b32 {s(sT)}, {s(sCH)}, 12")
    a("s_waitcnt lgkmcnt(0)")
    for i in range(8):
        a(f"v_add_f32_e64 {v(vY+i)}, {v(vP+i)}, {v(vP+8+i)}")
    for i in range(8):
        a(f"v_add_f32_e64 {v(vY+i)}, {v(vY+i)}, {v(vP+16+i)}")
    for i in range(4):
        a(f"v_lshlrev_b32 {v(vE+2*i)}, 16, {v(vUu+i)}")
        a(f"v_and_b32 {v(vE+2*i+1)}, 0xffff0000, {v(vUu+i)}")
    for i in range(8):
        a(f"v_fma_f32 {v(vY+i)}, {v(vE+i)}, {v(vDsk)}, {v(vY+i)}")
    for i in range(4):
        a(f"v_cvt_pk_bf16_f32 {v(vUu+i)}, {v(vY+2*i)}, {v(vY+2*i+1)}")
    for rr in range(2):
        a(f"buffer_store_dwordx2 {v(vUu+2*rr,2)}, {v(vT3)}, {s(rST,4)}, {s(sT)} offen offset:{32*rr}")
    ST.stamp()
    a("s_waitcnt vmcnt(0)")
    ST.stamp()
    ST.flush(pWS, vT, vT2, sT, rST, off=16384)
    a("s_waitcnt vmcnt(0)")
    a(f"{end}:")
    a("s_endpgm")
    return dict(vgpr=V.hi, lds=LDS)
```

```python
from common import *
LOG2E = 0x3fb8aa3b

def gen_kC(a, name, dbg_stamp=False):
    NST = 11
    SLOT = 32768
    STT = 4 * SLOT
    OUTT = STT + 8192
    RED = 0
    LDS = OUTT + 8192
    V = Regs('v', 1, 256); S = Regs('s', 4, 100)
    end = a.lab("C_end")
    kernel_begin(a, name)
    a("s_cmp_ge_u32 s2, 256")
    a(f"s_cbranch_scc1 {end}")
    ST = Stamps(a, S, dbg_stamp); ST.start()
    pU = S.alloc(2, 2); pW2 = S.alloc(2, 2); pOut = S.alloc(2, 2); pWS = S.alloc(2, 2)
    a(f"s_load_dwordx2 {s(pU,2)}, s[0:1], {KA['u']}")
    a(f"s_load_dwordx2 {s(pW2,2)}, s[0:1], {KA['w2']}")
    a(f"s_load_dwordx2 {s(pOut,2)}, s[0:1], {KA['out']}")
    a(f"s_load_dwordx2 {s(pWS,2)}, s[0:1], {KA['ws']}")
    rX = S.alloc(4, 4); rW = S.alloc(4, 4); rACT = S.alloc(4, 4); rST = S.alloc(4, 4); rO = S.alloc(4, 4); rD = S.alloc(4, 4)
    sW = S.alloc(); sG = S.alloc(); sJ = S.alloc(); sKG = S.alloc(); sDH = S.alloc(); sLH = S.alloc(); sPart = S.alloc()
    sT = S.alloc(); sT2 = S.alloc()
    vLane = V.alloc(); vT = V.alloc(); vT2 = V.alloc(); vT3 = V.alloc()
    a(f"v_lshrrev_b32 {v(vT)}, 6, v0")
    a(f"v_and_b32 {v(vLane)}, 63, v0")
    a(f"v_readfirstlane_b32 {s(sW)}, {v(vT)}")
    a(f"s_and_b32 {s(sG)}, s2, 7")
    a(f"s_lshr_b32 {s(sT)}, s2, 6")
    a(f"s_lshl_b32 {s(sT)}, {s(sT)}, 3")
    a(f"s_add_u32 {s(sG)}, {s(sG)}, {s(sT)}")
    a(f"s_lshr_b32 {s(sJ)}, s2, 3")
    a(f"s_and_b32 {s(sJ)}, {s(sJ)}, 7")
    a(f"s_lshr_b32 {s(sKG)}, {s(sW)}, 2")
    a(f"s_and_b32 {s(sPart)}, {s(sW)}, 3")
    a(f"s_bfe_u32 {s(sDH)}, {s(sW)}, 0x10001")
    a(f"s_and_b32 {s(sLH)}, {s(sW)}, 1")
    vDo = V.alloc(); vSo = V.alloc(); vXo = V.alloc()
    a(f"v_lshrrev_b32 {v(vT)}, 3, {v(vLane)}")
    a(f"v_lshlrev_b32 {v(vT3)}, 10, {v(vT)}")
    a(f"v_lshrrev_b32 {v(vT2)}, 2, {v(vLane)}")
    a(f"v_and_b32 {v(vT2)}, 4, {v(vT2)}")
    a(f"v_xor_b32 {v(vT2)}, {v(vT2)}, {v(vLane)}")
    a(f"v_and_b32 {v(vT2)}, 7, {v(vT2)}")
    a(f"v_lshl_add_u32 {v(vDo)}, {v(vT2)}, 4, {v(vT3)}")
    a(f"v_lshlrev_b32 {v(vT2)}, 4, {v(vLane)}")
    a(f"s_cmp_ge_u32 {s(sPart)}, 2")
    a(f"s_cselect_b64 vcc, -1, 0")
    a(f"v_cndmask_b32 {v(vDo)}, {v(vDo)}, {v(vT2)}, vcc")
    a(f"s_lshl_b32 {s(sT)}, {s(sW)}, 3")
    a(f"v_add_u32 {v(vT)}, {s(sT)}, {v(vT)}")
    a(f"v_and_b32 {v(vT2)}, 7, {v(vLane)}")
    a(f"v_lshlrev_b32 {v(vT2)}, 4, {v(vT2)}")
    a(f"v_lshl_add_u32 {v(vSo)}, {v(vT)}, 12, {v(vT2)}")
    a(f"v_lshl_add_u32 {v(vXo)}, {v(vT)}, 10, {v(vT2)}")
    vOr = V.alloc()
    a(f"v_xor_b32 {v(vT2)}, {v(vT)}, {v(vLane)}")
    a(f"v_and_b32 {v(vT2)}, 7, {v(vT2)}")
    a(f"v_lshlrev_b32 {v(vT2)}, 4, {v(vT2)}")
    a(f"v_lshl_add_u32 {v(vOr)}, {v(vT)}, 7, {v(vT2)}")
    a(f"v_add_u32 {v(vOr)}, {OUTT}, {v(vOr)}")
    vAb = V.alloc(); vBb = V.alloc(); vA = V.alloc(); vB = V.alloc(); vI = V.alloc(); vGm = V.alloc()
    a(f"v_and_b32 {v(vI)}, 15, {v(vLane)}")
    a(f"v_lshrrev_b32 {v(vGm)}, 4, {v(vLane)}")
    a(f"v_lshrrev_b32 {v(vT)}, 1, {v(vGm)}")
    a(f"v_lshlrev_b32 {v(vT)}, 3, {v(vT)}")
    a(f"v_lshrrev_b32 {v(vT2)}, 2, {v(vI)}")
    a(f"v_add_u32 {v(vT)}, {v(vT)}, {v(vT2)}")
    a(f"v_lshlrev_b32 {v(vT)}, 7, {v(vT)}")
    a(f"v_and_b32 {v(vT2)}, 1, {v(vGm)}")
    a(f"v_lshlrev_b32 {v(vT2)}, 1, {v(vT2)}")
    a(f"v_bfe_u32 {v(vT3)}, {v(vI)}, 1, 1")
    a(f"v_add_u32 {v(vT2)}, {v(vT2)}, {v(vT3)}")
    a(f"s_lshl_b32 {s(sT)}, {s(sDH)}, 2")
    a(f"v_add_u32 {v(vT2)}, {s(sT)}, {v(vT2)}")
    a(f"v_lshrrev_b32 {v(vT3)}, 1, {v(vI)}")
    a(f"v_and_b32 {v(vT3)}, 4, {v(vT3)}")
    a(f"v_xor_b32 {v(vT2)}, {v(vT2)}, {v(vT3)}")
    a(f"v_lshl_add_u32 {v(vT)}, {v(vT2)}, 4, {v(vT)}")
    a(f"v_and_b32 {v(vT2)}, 1, {v(vI)}")
    a(f"v_lshl_add_u32 {v(vT)}, {v(vT2)}, 3, {v(vT)}")
    a(f"s_lshl_b32 {s(sT)}, {s(sKG)}, 14")
    a(f"v_add_u32 {v(vAb)}, {s(sT)}, {v(vT)}")
    a(f"v_lshrrev_b32 {v(vT)}, 5, {v(vLane)}")
    a(f"v_lshlrev_b32 {v(vT)}, 10, {v(vT)}")
    a(f"v_and_b32 {v(vT2)}, 31, {v(vLane)}")
    a(f"v_lshl_add_u32 {v(vT)}, {v(vT2)}, 3, {v(vT)}")
    a(f"s_lshl_b32 {s(sT2)}, {s(sLH)}, 8")
    a(f"s_add_u32 {s(sT)}, {s(sT)}, {s(sT2)}")
    a(f"s_add_u32 {s(sT)}, {s(sT)}, 8192")
    a(f"v_add_u32 {v(vBb)}, {s(sT)}, {v(vT)}")
    a("s_waitcnt lgkmcnt(0)")
    srd(a, rX, pU, 2048 * 1024)
    srd(a, rW, pW2, 1376 * 1024)
    a(f"s_mul_i32 {s(sT)}, {s(sG)}, {ACT_G}")
    a(f"s_add_u32 {s(sT)}, {s(sT)}, {WS_ACT}")
    srd(a, rACT, pWS, ACT_G, off=s(sT))
    srd(a, rST, pWS, 512 * 4096, off=WS_ST)
    srd(a, rO, pOut, 2048 * 1024)
    sSo = S.alloc(); sStep = S.alloc(); sAdv = S.alloc(); sLdsB = S.alloc(); sSlotW = S.alloc()
    a(f"s_cmp_ge_u32 {s(sPart)}, 2")
    for i in range(4): a(f"s_cselect_b32 {s(rD+i)}, {s(rACT+i)}, {s(rW+i)}")
    a(f"s_mov_b32 {s(rD+3)}, 0x00020000")
    a(f"s_mov_b32 {s(sStep)}, 8192")
    a(f"s_mov_b32 {s(sAdv)}, {64*1024}")
    a(f"s_cselect_b32 {s(sStep)}, 1024, {s(sStep)}")
    a(f"s_cselect_b32 {s(sAdv)}, {16*512}, {s(sAdv)}")
    a(f"s_mul_i32 {s(sT)}, {s(sKG)}, {16*44*1024}")
    a(f"s_lshl_b32 {s(sT2)}, {s(sPart)}, 15")
    a(f"s_add_u32 {s(sT)}, {s(sT)}, {s(sT2)}")
    a(f"s_lshl_b32 {s(sT2)}, {s(sJ)}, 7")
    a(f"s_add_u32 {s(sSo)}, {s(sT)}, {s(sT2)}")
    a(f"s_mul_i32 {s(sT)}, {s(sKG)}, {4*44*512}")
    a(f"s_sub_u32 {s(sT2)}, {s(sPart)}, 2")
    a(f"s_lshl_b32 {s(sT2)}, {s(sT2)}, 12")
    a(f"s_add_u32 {s(sT)}, {s(sT)}, {s(sT2)}")
    a(f"s_cmp_ge_u32 {s(sPart)}, 2")
    a(f"s_cselect_b32 {s(sSo)}, {s(sT)}, {s(sSo)}")
    a(f"s_lshl_b32 {s(sLdsB)}, {s(sKG)}, 14")
    a(f"s_lshl_b32 {s(sT)}, {s(sPart)}, 12")
    a(f"s_add_u32 {s(sLdsB)}, {s(sLdsB)}, {s(sT)}")
    a(f"s_mov_b32 {s(sSlotW)}, 0")
    vX = V.alloc(4, 4)
    a(f"s_lshl_b32 {s(sT)}, {s(sG)}, 16")
    a(f"s_lshl_b32 {s(sT2)}, {s(sJ)}, 7")
    sXo = S.alloc()
    a(f"s_add_u32 {s(sXo)}, {s(sT)}, {s(sT2)}")
    a(f"buffer_load_dwordx4 {v(vX,4)}, {v(vXo)}, {s(rX,4)}, {s(sXo)} offen")
    a(f"s_lshl_b32 {s(sT)}, {s(sJ)}, 18")
    a(f"s_lshl_b32 {s(sT2)}, {s(sG)}, 7")
    a(f"s_add_u32 {s(sT)}, {s(sT)}, {s(sT2)}")
    a(f"s_lshl_b32 {s(sT2)}, {s(sW)}, 10")
    a(f"s_add_u32 m0, {s(sT2)}, {STT}")
    a("s_nop 0")
    a(f"buffer_load_dwordx4 {v(vSo)}, {s(rST,4)}, {s(sT)} offen lds")
    sSoq = S.alloc(); sM0 = S.alloc()
    def dma_one(q):
        if q == 0:
            a(f"s_add_u32 {s(sM0)}, {s(sSlotW)}, {s(sLdsB)}")
            a(f"s_mov_b32 {s(sSoq)}, {s(sSo)}")
        a(f"s_add_u32 m0, {s(sM0)}, {1024*q}")
        a(f"s_nop 0")
        a(f"buffer_load_dwordx4 {v(vDo)}, {s(rD,4)}, {s(sSoq)} offen lds")
        if q < 3:
            a(f"s_add_u32 {s(sSoq)}, {s(sSoq)}, {s(sStep)}")
        else:
            a(f"s_add_u32 {s(sSo)}, {s(sSo)}, {s(sAdv)}")
            a(f"s_add_u32 {s(sSlotW)}, {s(sSlotW)}, {SLOT}")
            a(f"s_and_b32 {s(sSlotW)}, {s(sSlotW)}, {4*SLOT-1}")
    for st in range(3):
        for q in range(4): dma_one(q)
    vAcc = V.alloc(16, 4)
    fA = [V.alloc(4, 4), V.alloc(4, 4)]; fB = [V.alloc(4, 4), V.alloc(4, 4)]
    for i in range(16): a(f"v_mov_b32 {v(vAcc+i)}, 0")
    def read_step(st, tp):
        a(f"ds_read_b64_tr_b16 {v(fA[st],2)}, {v(vA)} offset:{tp*2048}")
        a(f"ds_read_b64_tr_b16 {v(fA[st]+2,2)}, {v(vA)} offset:{tp*2048+512}")
        a(f"ds_read_b64 {v(fB[st],2)}, {v(vB)} offset:{tp*2048}")
        a(f"ds_read_b64 {v(fB[st]+2,2)}, {v(vB)} offset:{tp*2048+512}")
    sStage = S.alloc(); sSlotN = S.alloc()
    a(f"s_mov_b32 {s(sStage)}, 0")
    a(f"s_mov_b32 {s(sSlotN)}, 0")
    a(f"v_mov_b32 {v(vA)}, {v(vAb)}")
    a(f"v_mov_b32 {v(vB)}, {v(vBb)}")
    ST.stamp()
    a("s_waitcnt vmcnt(8)")
    a("s_barrier")
    ST.stamp()
    read_step(0, 0)
    loop = a.lab("C_loop")
    a(f"{loop}:")
    a("s_waitcnt vmcnt(4)")
    a("s_barrier")
    a(f"s_cmp_ge_u32 {s(sStage)}, {NST-3}")
    a(f"s_cselect_b32 {s(sSo)}, 0x40000000, {s(sSo)}")
    for tp in range(4):
        cur = tp & 1; nxt = cur ^ 1
        if tp == 3:
            a(f"s_add_u32 {s(sSlotN)}, {s(sSlotN)}, {SLOT}")
            a(f"s_and_b32 {s(sSlotN)}, {s(sSlotN)}, {4*SLOT-1}")
            a(f"v_add_u32 {v(vA)}, {s(sSlotN)}, {v(vAb)}")
            a(f"v_add_u32 {v(vB)}, {s(sSlotN)}, {v(vBb)}")
        read_step(nxt, (tp + 1) & 3)
        dma_one(tp)
        a("s_waitcnt lgkmcnt(4)")
        a(f"v_mfma_f32_32x32x16_bf16 {v(vAcc,16)}, {v(fA[cur],4)}, {v(fB[cur],4)}, {v(vAcc,16)}")
    a(f"s_add_u32 {s(sStage)}, {s(sStage)}, 1")
    a(f"s_cmp_lt_u32 {s(sStage)}, {NST}")
    a(f"s_cbranch_scc1 {loop}")
    a("s_waitcnt vmcnt(0) lgkmcnt(0)")
    a("s_barrier")
    ST.stamp()
    vRa = V.alloc(); vRb = V.alloc(); vK = V.alloc(8, 4); vP = V.alloc(8, 4)
    a(f"s_and_b32 {s(sT)}, {s(sW)}, 3")
    a(f"s_lshl_b32 {s(sT)}, {s(sT)}, 12")
    a(f"s_lshl_b32 {s(sT2)}, {s(sKG)}, 11")
    a(f"v_lshlrev_b32 {v(vT)}, 4, {v(vLane)}")
    a(f"s_add_u32 {s(sT2)}, {s(sT)}, {s(sT2)}")
    a(f"v_add_u32 {v(vRa)}, {s(sT2)}, {v(vT)}")
    a(f"v_xor_b32 {v(vRb)}, 2048, {v(vRa)}")
    lab1 = a.lab("C_kg1"); lab2 = a.lab("C_kgj")
    a("s_nop 7")
    a(f"s_cmp_eq_u32 {s(sKG)}, 1")
    a(f"s_cbranch_scc1 {lab1}")
    a(f"ds_write_b128 {v(vRa)}, {v(vAcc+8,4)}")
    a(f"ds_write_b128 {v(vRa)}, {v(vAcc+12,4)} offset:1024")
    for i in range(8): a(f"v_mov_b32 {v(vK+i)}, {v(vAcc+i)}")
    a(f"s_branch {lab2}")
    a(f"{lab1}:")
    a(f"ds_write_b128 {v(vRa)}, {v(vAcc,4)}")
    a(f"ds_write_b128 {v(vRa)}, {v(vAcc+4,4)} offset:1024")
    for i in range(8): a(f"v_mov_b32 {v(vK+i)}, {v(vAcc+8+i)}")
    a(f"{lab2}:")
    vS = V.alloc(4, 4)
    a(f"v_lshrrev_b32 {v(vT)}, 1, {v(vGm)}")
    a(f"v_lshlrev_b32 {v(vT)}, 2, {v(vT)}")
    a(f"v_lshrrev_b32 {v(vT2)}, 2, {v(vI)}")
    a(f"v_add_u32 {v(vT)}, {v(vT)}, {v(vT2)}")
    a(f"s_lshl_b32 {s(sT)}, {s(sDH)}, 5")
    a(f"s_lshl_b32 {s(sT2)}, {s(sKG)}, 4")
    a(f"s_add_u32 {s(sT)}, {s(sT)}, {s(sT2)}")
    a(f"v_add_u32 {v(vT)}, {s(sT)}, {v(vT)}")
    a(f"v_lshlrev_b32 {v(vT)}, 7, {v(vT)}")
    a(f"v_and_b32 {v(vT2)}, 1, {v(vGm)}")
    a(f"v_lshlrev_b32 {v(vT2)}, 5, {v(vT2)}")
    a(f"v_and_b32 {v(vT3)}, 3, {v(vI)}")
    a(f"v_lshl_add_u32 {v(vT2)}, {v(vT3)}, 3, {v(vT2)}")
    a(f"s_lshl_b32 {s(sT)}, {s(sLH)}, 6")
    a(f"s_add_u32 {s(sT)}, {s(sT)}, {STT}")
    a(f"v_add3_u32 {v(vT)}, {v(vT)}, {v(vT2)}, {s(sT)}")
    a(f"ds_read_b64_tr_b16 {v(vS,2)}, {v(vT)}")
    a(f"ds_read_b64_tr_b16 {v(vS+2,2)}, {v(vT)} offset:1024")
    a("s_waitcnt lgkmcnt(0)")
    a("s_barrier")
    a(f"ds_read_b128 {v(vP,4)}, {v(vRb)}")
    a(f"ds_read_b128 {v(vP+4,4)}, {v(vRb)} offset:1024")
    vOw = V.alloc(2)
    a(f"v_and_b32 {v(vT)}, 31, {v(vLane)}")
    a(f"s_lshl_b32 {s(sT)}, {s(sLH)}, 5")
    a(f"v_add_u32 {v(vT)}, {s(sT)}, {v(vT)}")
    a(f"s_lshl_b32 {s(sT)}, {s(sDH)}, 2")
    a(f"s_lshl_b32 {s(sT2)}, {s(sKG)}, 1")
    a(f"s_add_u32 {s(sT)}, {s(sT)}, {s(sT2)}")
    a(f"v_and_b32 {v(vT2)}, 7, {v(vT)}")
    a(f"v_lshlrev_b32 {v(vT)}, 7, {v(vT)}")
    a(f"v_lshrrev_b32 {v(vT3)}, 5, {v(vLane)}")
    a(f"v_lshl_add_u32 {v(vT)}, {v(vT3)}, 3, {v(vT)}")
    a(f"v_add_u32 {v(vT)}, {OUTT}, {v(vT)}")
    for rp in range(2):
        a(f"s_add_u32 {s(sT2)}, {s(sT)}, {rp}")
        a(f"v_xor_b32 {v(vT3)}, {s(sT2)}, {v(vT2)}")
        a(f"v_lshl_add_u32 {v(vOw+rp)}, {v(vT3)}, 4, {v(vT)}")
    a("s_waitcnt lgkmcnt(0)")
    vE = V.alloc(8, 4); vF = V.alloc(8, 4); vPk = V.alloc(4, 2)
    for i in range(8): a(f"v_add_f32_e64 {v(vK+i)}, {v(vK+i)}, {v(vP+i)}")
    for i in range(8): a(f"v_mul_f32 {v(vE+i)}, 0xbfb8aa3b, {v(vK+i)}")
    for i in range(8): a(f"v_exp_f32 {v(vE+i)}, {v(vE+i)}")
    for i in range(4):
        a(f"v_lshlrev_b32 {v(vF+2*i)}, 16, {v(vS+i)}")
        a(f"v_and_b32 {v(vF+2*i+1)}, 0xffff0000, {v(vS+i)}")
    for i in range(8): a(f"v_add_f32_e64 {v(vE+i)}, {v(vE+i)}, 1.0")
    for i in range(8): a(f"v_rcp_f32 {v(vE+i)}, {v(vE+i)}")
    for i in range(8): a(f"v_mul_f32_e64 {v(vK+i)}, {v(vK+i)}, {v(vF+i)}")
    for i in range(8): a(f"v_mul_f32_e64 {v(vK+i)}, {v(vK+i)}, {v(vE+i)}")
    for i in range(4): a(f"v_cvt_pk_bf16_f32 {v(vPk+i)}, {v(vK+2*i)}, {v(vK+2*i+1)}")
    for rp in range(2):
        a(f"ds_write_b64 {v(vOw+rp)}, {v(vPk+2*rp,2)}")
    a("s_waitcnt lgkmcnt(0)")
    a("s_barrier")
    a(f"ds_read_b128 {v(vS,4)}, {v(vOr)}")
    for i in range(4):
        a(f"v_lshlrev_b32 {v(vE+2*i)}, 16, {v(vX+i)}")
        a(f"v_and_b32 {v(vE+2*i+1)}, 0xffff0000, {v(vX+i)}")
    a("s_waitcnt lgkmcnt(0)")
    for i in range(4):
        a(f"v_lshlrev_b32 {v(vF+2*i)}, 16, {v(vS+i)}")
        a(f"v_and_b32 {v(vF+2*i+1)}, 0xffff0000, {v(vS+i)}")
    for i in range(8): a(f"v_add_f32_e64 {v(vE+i)}, {v(vE+i)}, {v(vF+i)}")
    for i in range(4): a(f"v_cvt_pk_bf16_f32 {v(vS+i)}, {v(vE+2*i)}, {v(vE+2*i+1)}")
    a(f"buffer_store_dwordx4 {v(vS,4)}, {v(vXo)}, {s(rO,4)}, {s(sXo)} offen")
    ST.stamp()
    a("s_waitcnt vmcnt(0)")
    ST.stamp()
    ST.flush(pWS, vT, vT2, sT, rST, off=32768)
    a("s_waitcnt vmcnt(0)")
    a(f"{end}:")
    a("s_endpgm")
    return dict(vgpr=V.hi, lds=LDS)
```

```python
import sys
from common import *
from kA import gen_kA
from kB import gen_kB
from kC import gen_kC
stamp = len(sys.argv) > 2 and sys.argv[2] == "stamp"
out = sys.argv[1] if len(sys.argv) > 1 else "recurrent_scan__ssm_conv_s4d__dense_activation_mish__prompt.s"
hdr = open("recurrent_scan__ssm_conv_s4d__dense_activation_mish__prompt.s.ref").read().split("; Override")[0]
bodies = []; infos = []
names = ["s4d_a_kernel", "s4d_b_kernel", "s4d_c_kernel"]
for nm, gen in zip(names, [gen_kA, gen_kB, gen_kC]):
    b = Asm(); b.uid = 1000 * (len(bodies) + 1)
    infos.append(gen(b, nm, dbg_stamp=stamp)); bodies.append(b)
a = Asm()
a.lines += hdr.rstrip("\n").split("\n")
for nm, inf in zip(names, infos):
    a(f"; @launch kernel={nm} grid=(256,1,1) block=(512,1,1) lds={inf['lds']}")
a('.amdgcn_target "amdgcn-amd-amdhsa--gfx950"')
a(".text")
for b in bodies: a.lines += b.lines
a('.section .rodata,"a"')
for nm, inf in zip(names, infos):
    a(".p2align 6")
    kernel_desc(a, nm, inf['vgpr'])
open(out, "w").write(a.text())
print(infos)
```
